```python
import torch

def _softmax(x, axis=-1):
    return torch.softmax(x, dim=axis)

def _gelu(x):
    return torch.nn.functional.gelu(x, approximate='tanh')

def _silu(x):
    return torch.nn.functional.silu(x)

def _sigmoid(x):
    return torch.sigmoid(x)

def _layernorm(x, axis=-1, eps=1e-05):
    m = x.mean(dim=axis, keepdim=True)
    v = x.var(dim=axis, keepdim=True, unbiased=False)
    return (x - m) / torch.sqrt(v + eps)

def _scatter_add(tgt, idx, src, axis=0):
    return tgt.clone().index_add_(axis, idx, src)

def _segment_sum(src, seg, n):
    out = torch.zeros((n,) + src.shape[1:], dtype=src.dtype)
    return out.index_add_(0, seg, src)

def _pad(x, pw):
    flat = tuple((v for pair in reversed(pw) for v in pair))
    return torch.nn.functional.pad(x, flat)
kernel_name = 'gather_scatter__tensor_product_equiv_equiformer__graph'

def setup_inputs():

    _w = lambda a: (lambda t: t.to(torch.bfloat16) if t.is_floating_point() else t)(torch.as_tensor(a))
    N, deg, C, De = (12500, 64, 64, max(0, 1))
    E = N * deg
    src = (lambda lo, hi, *s: torch.randint(lo, hi, s))(0, N, E).to(torch.int64)
    dst = (lambda lo, hi, *s: torch.randint(lo, hi, s))(0, N, E).to(torch.int64)
    rvec = (lambda *s: torch.randn(*s, dtype=torch.bfloat16) * 0.05)(E, 3).to(float)
    rn = (torch.linalg.norm(rvec, dim=-1, keepdim=True) + 1e-06).to(float)
    rhat = (rvec / rn).to(float)
    eps = torch.zeros((3, 3, 3), dtype=float)
    eps[0, 1, 2] = eps[1, 2, 0] = eps[2, 0, 1] = 1.0
    eps[0, 2, 1] = eps[2, 1, 0] = eps[1, 0, 2] = -1.0
    return {'x': _w((lambda *s: torch.randn(*s, dtype=torch.bfloat16) * 0.4)(N, 4 * C).to(float)), 'rhat': _w(rhat), 'e_attr': _w((lambda *s: torch.randn(*s, dtype=torch.bfloat16) * 0.4)(E, De).to(float)), 'src': _w(src), 'dst': _w(dst), 'w_rad': _w((lambda *s: torch.randn(*s, dtype=torch.bfloat16) * 0.4)(De, 5 * C).to(float)), 'w_si0': _w((lambda *s: torch.randn(*s, dtype=torch.bfloat16) * 0.4)(2 * C, C).to(float)), 'w_si1': _w((lambda *s: torch.randn(*s, dtype=torch.bfloat16) * 0.05)(3 * C, C).to(float)), 'cg_eps': _w(eps)}

def reference(x, rhat, e_attr, src, dst, w_rad, w_si0, w_si1, cg_eps):
    N = x.shape[0]
    C = w_si0.shape[1]
    E = rhat.shape[0]
    x0 = x[:, :C].clone()
    x1 = x[:, C:].reshape(N, 3, C)
    R = (e_attr @ w_rad).reshape(E, 5, C)
    f0 = x0[src]
    f1 = x1[src]
    Y1 = rhat
    p00_0 = f0 * R[:, 0, :]
    p11_0 = torch.einsum('ejc,ej->ec', f1, Y1) * R[:, 1, :]
    p01_1 = torch.einsum('ec,ej->ejc', f0, Y1) * R[:, 2, :][:, None, :]
    p10_1 = f1 * R[:, 3, :][:, None, :]
    p11_1 = torch.einsum('ijk,ekc,ej->eic', cg_eps, f1, Y1) * R[:, 4, :][:, None, :]
    m0 = torch.concatenate([p00_0, p11_0], axis=-1) @ w_si0
    m1 = torch.einsum('ejp,pc->ejc', torch.concatenate([p01_1, p10_1, p11_1], axis=-1), w_si1)
    agg0 = _segment_sum(m0, dst, N)
    agg1 = _segment_sum(m1.reshape(E, 3 * C), dst, N).reshape(N, 3, C)
    gate = _sigmoid(agg0)
    out1 = agg1 * gate[:, None, :]
    return torch.concatenate([agg0, out1.reshape(N, 3 * C)], axis=-1)
```

```python
import sys

NAME = "gather_scatter__tensor_product_equiv_equiformer__graph"
N = 12500
E = 800000
BN = 49
CH = 3136
CHB = CH * 12
TAB = 0x940000
WFO = 0x980000
WSEND = WFO + 40960
DIAG = 0xA00000

HEADER = open("cdna_kernels/" + NAME + ".s.ref").read().split("; Override launch")[0]


class Asm:
    def __init__(self):
        self.L = []

    def __call__(self, s):
        for line in s.split("\n"):
            line = line.strip()
            if line:
                self.L.append(line if line.endswith(":") else "    " + line)

    def text(self):
        return "\n".join(self.L) + "\n"


def srd(A, d, lo, nrec):
    A(f"s_mov_b32 s{d}, s{lo}")
    A(f"s_mov_b32 s{d+1}, s{lo+1}")
    A(f"s_mov_b32 s{d+2}, {nrec}")
    A(f"s_mov_b32 s{d+3}, 0x20000")


def wave_scan(A, v):
    for ctl in ["row_shr:1 row_mask:0xf bank_mask:0xf bound_ctrl:0",
                "row_shr:2 row_mask:0xf bank_mask:0xf bound_ctrl:0",
                "row_shr:4 row_mask:0xf bank_mask:0xf bound_ctrl:0",
                "row_shr:8 row_mask:0xf bank_mask:0xf bound_ctrl:0",
                "row_bcast:15 row_mask:0xa bank_mask:0xf",
                "row_bcast:31 row_mask:0xc bank_mask:0xf"]:
        A("s_nop 1")
        A(f"v_add_u32_dpp v{v}, v{v}, v{v} {ctl}")


def stamp(A, o, idx):
    if o.diag:
        A(f"s_memrealtime s[{64+2*idx}:{65+2*idx}]")


def stamp_store(A, o, nst, kern, srd_ws, swave, vt):
    if not o.diag:
        return
    A("s_waitcnt lgkmcnt(0)")
    A("s_mov_b64 exec, 1")
    for i in range(8):
        A(f"v_mov_b32 v{vt+i}, s{64+2*i}" if i < nst else f"v_mov_b32 v{vt+i}, 0")
    A(f"s_lshl_b32 s60, s2, 4")
    A(f"s_add_u32 s60, s60, s{swave}")
    A(f"s_lshl_b32 s60, s60, 5")
    A(f"s_add_u32 s60, s60, {DIAG + kern*256*16*32}")
    A(f"s_mov_b32 s{srd_ws+2}, {DIAG + 2*256*16*32}")
    A(f"v_mov_b32 v{vt+8}, 0")
    A(f"buffer_store_dwordx4 v[{vt}:{vt+3}], v{vt+8}, s[{srd_ws}:{srd_ws+3}], s60 offen")
    A(f"buffer_store_dwordx4 v[{vt+4}:{vt+7}], v{vt+8}, s[{srd_ws}:{srd_ws+3}], s60 offen offset:16")


K1_HIST, K1_OFFS, K1_STAGE = 0, 1024, 2048
K1_LDS = 2048 + 832 * 3 * 16


def gen_k1(A, o):
    st = o.k1_store
    A("part_kernel:")
    stamp(A, o, 0)
    A("s_load_dwordx16 s[4:19], s[0:1], 0")
    A("s_load_dwordx2 s[20:21], s[0:1], 88")
    A("s_cmp_ge_u32 s2, 256")
    A("s_cbranch_scc1 K1_end")
    A("v_lshrrev_b32 v1, 6, v0")
    A("v_lshlrev_b32 v2, 2, v0")
    A("v_mov_b32 v3, 0")
    A("v_readfirstlane_b32 s3, v1")
    A("ds_write_b32 v2, v3")
    A("v_lshlrev_b32 v4, 4, v0")
    A("v_lshlrev_b32 v5, 3, v0")
    A("v_add_u32 v6, v4, v5")
    A(f"s_mul_i32 s22, s2, {CH*4}")
    A(f"s_mul_i32 s23, s2, {CH*2}")
    A(f"s_mul_i32 s24, s2, {CH*6}")
    A("s_cmp_eq_u32 s3, 13")
    A("s_cbranch_scc1 K1_helper")
    A("s_waitcnt lgkmcnt(0)")
    srd(A, 28, 12, E * 4)
    A("buffer_load_dwordx4 v[8:11], v4, s[28:31], s22 offen")
    srd(A, 32, 10, E * 4)
    A("buffer_load_dwordx4 v[12:15], v4, s[32:35], s22 offen")
    srd(A, 36, 8, E * 2)
    A("buffer_load_dwordx2 v[16:17], v5, s[36:39], s23 offen")
    srd(A, 40, 6, E * 6)
    A("buffer_load_dwordx4 v[18:21], v6, s[40:43], s24 offen")
    A("buffer_load_dwordx2 v[22:23], v6, s[40:43], s24 offen offset:16")
    A("s_add_u32 s25, s2, 1")
    A(f"s_mul_i32 s25, s25, {CHB}")
    srd(A, 44, 20, "s25")
    srd(A, 48, 20, WSEND)
    A(f"s_mul_i32 s26, s2, {CHB}")
    A(f"s_mul_i32 s27, s2, {CH//4}")
    A(f"s_sub_u32 s27, {E//4}, s27")
    A(f"s_min_u32 s27, s27, {CH//4}")
    A("v_cmp_gt_u32 s[52:53], s27, v0")
    A("s_mov_b32 s54, 21400")
    A("s_mov_b32 s55, -49")
    A("s_mov_b32 s56, 671")
    A("s_mov_b32 s57, 0xffff0000")
    A("v_mov_b32 v7, 1")
    A("s_barrier")
    stamp(A, o, 1)
    A("s_waitcnt vmcnt(4)")
    for k in range(4):
        A(f"v_mul_u32_u24 v{24+k}, s54, v{8+k}")
    for k in range(4):
        A(f"v_lshrrev_b32 v{24+k}, 20, v{24+k}")
    for k in range(4):
        A(f"v_mad_i32_i24 v{8+k}, v{24+k}, s55, v{8+k}")
    for k in range(4):
        A(f"v_lshlrev_b32 v{24+k}, 2, v{24+k}")
    A("s_mov_b64 exec, s[52:53]")
    for k in range(4):
        A(f"ds_add_rtn_u32 v{28+k}, v{24+k}, v7 offset:{K1_HIST}")
    A("s_mov_b64 exec, -1")
    stamp(A, o, 2)
    A("s_waitcnt vmcnt(3)")
    for k in range(4):
        A(f"v_mul_u32_u24 v{32+4*k}, s56, v{12+k}")
    for k in range(4):
        A(f"v_lshrrev_b32 v{32+4*k}, 20, v{32+4*k}")
    for k in range(4):
        A(f"v_lshl_or_b32 v{32+4*k}, v{8+k}, 3, v{32+4*k}")
    for k in range(4):
        A(f"v_lshl_or_b32 v{32+4*k}, v{12+k}, 14, v{32+4*k}")
    for k in range(4):
        A(f"v_lshlrev_b32 v{32+4*k}, 2, v{32+4*k}")
    A("v_and_b32 v1, 63, v0")
    A("v_lshlrev_b32 v1, 4, v1")
    A("s_waitcnt lgkmcnt(0)")
    A("s_barrier")
    A(f"ds_read_b128 v[48:51], v1 offset:{K1_HIST}")
    A("s_waitcnt vmcnt(0)")
    stamp(A, o, 3)

    def bf(dst, base, idx):
        r = base + idx // 2
        if idx & 1:
            A(f"v_and_b32 v{dst}, s57, v{r}")
        else:
            A(f"v_lshlrev_b32 v{dst}, 16, v{r}")

    def coef(k):
        bf(8, 16, k)
        for j in range(3):
            bf(9 + j, 18, 3 * k + j)
        for j in range(3):
            A(f"v_mul_f32 v{9+j}, v8, v{9+j}")
        A(f"v_cvt_pk_bf16_f32 v{33+4*k}, v8, v9")
        A(f"v_cvt_pk_bf16_f32 v{34+4*k}, v10, v11")

    coef(0)
    A("s_waitcnt lgkmcnt(0)")
    A("v_add3_u32 v52, v48, v49, v50")
    A("v_add_u32 v52, v52, v51")
    A("v_mov_b32 v53, v52")
    wave_scan(A, 53)
    A("v_sub_u32 v56, v53, v52")
    A("v_add_u32 v57, v56, v48")
    A("v_add_u32 v58, v57, v49")
    A("v_add_u32 v59, v58, v50")
    for k in range(4):
        A(f"v_mul_u32_u24 v{60+k}, 12, v{56+k}")
    A(f"ds_write_b128 v1, v[60:63] offset:{K1_OFFS}")
    for k in range(4):
        A(f"ds_read_b32 v{24+k}, v{24+k} offset:{K1_OFFS}")
    coef(1)
    coef(2)
    coef(3)
    A("s_cmp_lg_u32 s3, 12")
    A("s_cbranch_scc1 K1_notab")
    A(f"s_mul_i32 s58, s2, {CH}")
    A("s_and_b32 s59, s2, 7")
    A("s_lshl_b32 s59, s59, 5")
    A("s_lshr_b32 s27, s2, 3")
    A("s_add_u32 s59, s59, s27")
    A("s_lshl_b32 s59, s59, 2")
    A(f"s_add_u32 s59, s59, {TAB}")
    A("v_lshlrev_b32 v2, 8, v1")
    for k in range(4):
        A(f"v_add_u32 v{56+k}, s58, v{56+k}")
    for k in range(4):
        A(f"v_lshl_or_b32 v{56+k}, v{56+k}, 12, v{48+k}")
    for k in range(4):
        A(f"buffer_store_dword v{56+k}, v2, s[48:51], s59 offen offset:{k*1024} {o.tab_store}")
    A("K1_notab:")
    A("s_waitcnt lgkmcnt(0)")
    for k in range(4):
        A(f"v_mad_u32_u24 v{24+k}, v{28+k}, 12, v{24+k}")
    A("s_mov_b64 exec, s[52:53]")
    for k in range(4):
        A(f"ds_write_b32 v{24+k}, v{32+4*k} offset:{K1_STAGE}")
        A(f"v_add_u32 v{24+k}, {K1_STAGE}, v{24+k}")
        A(f"ds_write2_b32 v{24+k}, v{33+4*k}, v{34+4*k} offset0:1 offset1:2")
    A("s_mov_b64 exec, -1")
    A("s_waitcnt lgkmcnt(0)")
    A("s_barrier")
    stamp(A, o, 4)
    for i in range(3):
        A(f"ds_read_b128 v[{8+4*i}:{11+4*i}], v4 offset:{K1_STAGE + i*832*16}")
    A(f"s_add_u32 s27, s26, {832*16}")
    A(f"s_add_u32 s58, s26, {2*832*16}")
    for i, so in enumerate(["s26", "s27", "s58"]):
        A(f"s_waitcnt lgkmcnt({2-i})")
        A(f"buffer_store_dwordx4 v[{8+4*i}:{11+4*i}], v4, s[44:47], {so} offen {st}")
    if o.diag:
        stamp(A, o, 5)
        A("s_waitcnt vmcnt(0)")
        stamp(A, o, 6)
        stamp_store(A, o, 7, 0, 48, 3, 32)
    A("K1_end:")
    A("s_endpgm")

    A("K1_helper:")
    A("v_and_b32 v1, 63, v0")
    A("s_mul_i32 s22, s2, 40")
    A("v_add_u32 v2, s22, v1")
    A("v_and_b32 v3, 3, v2")
    A("v_bfe_u32 v4, v2, 6, 2")
    A("v_lshrrev_b32 v5, 10, v2")
    A("v_lshl_or_b32 v3, v4, 3, v3")
    A("v_lshl_or_b32 v3, v5, 5, v3")
    A("v_bfe_u32 v4, v2, 2, 2")
    A("v_bfe_u32 v5, v2, 8, 2")
    A("v_bfe_u32 v6, v2, 4, 2")
    A("v_lshl_or_b32 v4, v5, 2, v4")
    A("v_lshl_or_b32 v4, v6, 4, v4")
    A("v_lshlrev_b32 v5, 6, v3")
    A("v_add_u32 v5, v5, v4")
    A("v_lshlrev_b32 v5, 1, v5")
    A("v_subrev_u32 v6, 16384, v5")
    A("v_lshlrev_b32 v7, 1, v3")
    A("s_waitcnt lgkmcnt(0)")
    srd(A, 28, 16, 128 * 64 * 2)
    srd(A, 32, 18, 192 * 64 * 2)
    srd(A, 36, 14, 320 * 2)
    srd(A, 40, 4, N * 512)
    srd(A, 48, 20, WSEND)
    A("buffer_load_ushort v8, v5, s[28:31], 0 offen")
    A("buffer_load_ushort v9, v5, s[28:31], 0 offen offset:512")
    A("buffer_load_ushort v10, v6, s[32:35], 0 offen")
    A("buffer_load_ushort v11, v6, s[32:35], 0 offen offset:512")
    A("buffer_load_ushort v12, v7, s[36:39], 0 offen")
    A("buffer_load_ushort v13, v7, s[36:39], 0 offen offset:8")
    A("s_barrier")
    npf = 0
    if o.k1_xwarm:
        A("v_lshlrev_b32 v14, 4, v1")
        A("s_mul_i32 s23, s2, 25600")
        for i in range(25):
            if i % 4 == 0 and i:
                A("s_add_u32 s23, s23, 4096")
            A(f"buffer_load_dwordx4 v[16:19], v14, s[40:43], s23 offen offset:{(i%4)*1024}")
        npf = 25
    A("s_barrier")
    A(f"s_waitcnt vmcnt({npf})")
    A("v_or_b32 v8, v8, v10")
    A("v_or_b32 v9, v9, v11")
    for r in (8, 9, 12, 13):
        A(f"v_lshlrev_b32 v{r}, 16, v{r}")
    A("v_mul_f32 v8, v8, v12")
    A("v_mul_f32 v9, v9, v13")
    A("v_cvt_pk_bf16_f32 v8, v8, v9")
    A("v_lshlrev_b32 v2, 2, v2")
    A("v_cmp_gt_u32 vcc, 40, v1")
    A(f"s_mov_b32 s22, {WFO}")
    A("s_mov_b64 exec, vcc")
    A(f"buffer_store_dword v8, v2, s[48:51], s22 offen {o.tab_store}")
    A("s_barrier")
    A("s_endpgm")


W, S = 10, 5
L_HIST, L_OFFS, L_FLAG = 0, 2048, 4224
L_JUNK = 4352
L_WF = 4608
TS = 144
NS = 8 * TS
L_PST = L_WF + 40960
L_REC = L_PST + W * S * NS
CAP = 3776
K2_LDS = L_REC + CAP * 16 + 256
assert K2_LDS <= 163840 and L_REC % 64 == 0
LIM2 = 14
assert LIM2 * 256 + 3 * BN <= CAP

ACC = 18
TR = 98


def gen_k2(A, o):
    D = o.D
    sX, sOUT, sWS, sTB = 12, 16, 20, 24
    sMK = 32
    sW, s5w, sDone, sLim, sMore, sRem, sLeft, sPend = 3, 4, 5, 6, 7, 8, 9, 10
    sT = 11
    sRM = 28
    sI, s512 = 30, 31
    sTH = 84
    sSL = 88
    sBK, sTO = 96, 97
    sPad = 98
    vLaneOff, vLane16, vSel0, vSel1, vRunA = 1, 2, 3, 4, 5
    T0 = 6

    def rec(i):
        return TR + 4 * i
    BINR = TR + 56

    A(f"{NAME}_kernel:")
    stamp(A, o, 0)
    A("s_load_dwordx2 s[4:5], s[0:1], 0")
    A("s_load_dwordx2 s[6:7], s[0:1], 72")
    A("s_load_dwordx2 s[8:9], s[0:1], 88")
    A("s_cmp_ge_u32 s2, 256")
    A("s_cbranch_scc1 K2_end")
    A("v_lshrrev_b32 v6, 6, v0")
    A(f"s_and_b32 s{sBK}, s2, 7")
    A(f"s_lshl_b32 s{sBK}, s{sBK}, 5")
    A(f"v_readfirstlane_b32 s{sW}, v6")
    A(f"s_lshr_b32 s{sT}, s2, 3")
    A(f"s_add_u32 s{sBK}, s{sBK}, s{sT}")
    A(f"s_lshl_b32 s{sTO}, s{sBK}, 10")
    A(f"s_add_u32 s{sTO}, s{sTO}, {TAB}")
    A(f"s_add_u32 s{sTB+2}, s{sTO}, 1024")
    A(f"s_mov_b32 s{sTB+3}, 0x20000")
    A("v_lshrrev_b32 v7, 4, v0")
    A("v_mul_u32_u24 v7, 28, v7")
    A("s_waitcnt lgkmcnt(0)")
    A(f"s_mov_b32 s{sTB}, s8")
    A(f"s_mov_b32 s{sTB+1}, s9")
    A(f"buffer_load_dwordx4 v[{BINR}:{BINR+3}], v7, s[{sTB}:{sTB+3}], s{sTO} offen")
    A(f"buffer_load_dwordx3 v[{BINR+4}:{BINR+6}], v7, s[{sTB}:{sTB+3}], s{sTO} offen offset:16")
    srd(A, sWS, 8, WSEND)
    srd(A, sX, 4, N * 512)
    srd(A, sOUT, 6, N * 512)
    A("v_and_b32 v8, 63, v0")
    A("v_lshlrev_b32 v9, 4, v8")
    A(f"s_lshl_b32 s{sT}, s{sW}, 12")
    A(f"s_add_u32 m0, s{sT}, {L_WF}")
    A(f"s_add_u32 s{sT}, s{sT}, {WFO}")
    for i in range(4):
        A(f"buffer_load_dwordx4 v9, s[{sWS}:{sWS+3}], s{sT} offen offset:{i*1024} lds")
    A(f"v_and_b32 v{vLaneOff}, 15, v0")
    A(f"v_lshlrev_b32 v{vLaneOff}, 4, v{vLaneOff}")
    A(f"v_and_b32 v{vLane16}, 48, v0")
    A("v_and_b32 v10, 3, v0")
    A("v_mul_u32_u24 v10, 0x202, v10")
    A("v_add_u32 v10, 0x100, v10")
    A("v_or_b32 v11, 0x0c0c0000, v10")
    A("v_lshlrev_b32 v10, 16, v10")
    A("v_or_b32 v10, 0x0c0c, v10")
    A("v_and_b32 v12, 4, v0")
    A("v_cmp_eq_u32 vcc, 0, v12")
    A("v_and_b32 v12, 8, v0")
    A("v_mov_b32 v13, 0x0c0c0c0c")
    A("v_cndmask_b32 v10, v10, v11, vcc")
    A("v_cmp_eq_u32 vcc, 0, v12")
    A(f"s_mul_i32 s{s5w}, s{sW}, 5")
    A(f"s_lshl_b32 s{sPad}, s{sW}, 4")
    A(f"v_cndmask_b32 v{vSel0}, v13, v10, vcc")
    A(f"v_cndmask_b32 v{vSel1}, v10, v13, vcc")
    A("v_and_b32 v10, 7, v0")
    A(f"v_add_u32 v10, s{s5w}, v10")
    A("v_lshlrev_b32 v10, 5, v10")
    A("v_lshrrev_b32 v11, 3, v8")
    A(f"v_lshl_add_u32 v{vRunA}, v11, 2, v10")
    for i in range(4):
        A(f"s_add_u32 s{sTH+i}, s{s5w}, {i+1}")
        A(f"s_lshl_b32 s{sTH+i}, s{sTH+i}, 5")
    A(f"s_mov_b32 s{s512}, 512")
    for r in range(ACC, ACC + 80, 2):
        A(f"v_mov_b64 v[{r}:{r+1}], 0")
    A(f"s_mov_b32 s{sDone}, 0")
    A(f"s_mov_b32 s{sLim}, 32")
    A("s_branch K2_round1")

    A("K2_round:")
    A("s_barrier")
    A("v_lshrrev_b32 v7, 4, v0")
    A("v_mul_u32_u24 v7, 28, v7")
    A(f"buffer_load_dwordx4 v[{BINR}:{BINR+3}], v7, s[{sTB}:{sTB+3}], s{sTO} offen")
    A(f"buffer_load_dwordx3 v[{BINR+4}:{BINR+6}], v7, s[{sTB}:{sTB+3}], s{sTO} offen offset:16")
    A("s_waitcnt vmcnt(0)")
    A("K2_round1:")
    A("v_lshlrev_b32 v6, 2, v0")
    A("v_mov_b32 v7, 0")
    A(f"ds_write_b32 v6, v7 offset:{L_HIST}")
    A(f"ds_write_b32 v7, v7 offset:{L_FLAG}")
    A("v_and_b32 v11, 15, v0")
    A(f"v_add_u32 v8, s{sDone}, v11")
    A("v_mul_u32_u24 v10, 12, v8")
    A("v_add_u32 v9, 16, v8")
    A("v_mov_b32 v12, 0xffff")
    A(f"v_cmp_gt_u32 vcc, s{sLim}, v11")
    A("v_add_u32 v11, 16, v11")
    A(f"s_add_u32 s{sT}, s{sDone}, s{sLim}")
    A("v_cndmask_b32 v8, v12, v8, vcc")
    A(f"v_cmp_gt_u32 vcc, s{sLim}, v11")
    A("v_mov_b32 v13, 16")
    A("s_nop 0")
    A("v_cndmask_b32 v9, v12, v9, vcc")
    stamp(A, o, 1)
    A("s_waitcnt vmcnt(4)")
    stamp(A, o, 2)
    for t in range(7):
        A(f"v_lshrrev_b32 v{rec(t)+3}, 12, v{BINR+t}")
        A(f"v_and_b32 v{BINR+t}, 0xfff, v{BINR+t}")
        A(f"v_mad_u32_u24 v{rec(t)+3}, v{rec(t)+3}, 12, v10")
        A(f"v_cmp_lt_u32 s[{sMK+2*t}:{sMK+2*t+1}], v8, v{BINR+t}")
        A(f"v_cmp_lt_u32 s[{sMK+14+2*t}:{sMK+14+2*t+1}], v9, v{BINR+t}")
    for t in range(7):
        A(f"s_mov_b64 exec, s[{sMK+2*t}:{sMK+2*t+1}]")
        A(f"buffer_load_dwordx3 v[{rec(t)}:{rec(t)+2}], v{rec(t)+3}, s[{sWS}:{sWS+3}], 0 offen")
    for t in range(7):
        A(f"s_mov_b64 exec, s[{sMK+14+2*t}:{sMK+14+2*t+1}]")
        A(f"s_cbranch_execz K2_sk1_{t}")
        A(f"buffer_load_dwordx3 v[{rec(7+t)}:{rec(7+t)+2}], v{rec(t)+3}, s[{sWS}:{sWS+3}], 0 offen offset:192")
        A(f"K2_sk1_{t}:")
    A("s_mov_b64 exec, -1")
    npf = 0
    if o.pf:
        A(f"s_lshr_b32 s{sI}, s2, 3")
        A(f"s_lshl_b32 s{sI}, s{sI}, {o.pf_shift}")
        A(f"s_mov_b32 m0, {L_JUNK}")
        A(f"v_lshlrev_b32 v14, {5+o.pf_shift}, v0")
        for i in range(o.pf):
            A(f"buffer_load_dword v14, s[{sX}:{sX+3}], s{sI} offen lds")
            if i + 1 < o.pf:
                A(f"s_add_u32 s{sI}, s{sI}, {640 << (5+o.pf_shift)}")
        npf = o.pf
    A(f"v_max3_u32 v11, v{BINR}, v{BINR+1}, v{BINR+2}")
    A(f"v_max3_u32 v11, v11, v{BINR+3}, v{BINR+4}")
    A(f"v_max3_u32 v11, v11, v{BINR+5}, v{BINR+6}")
    A(f"v_cmp_lt_u32 vcc, s{sT}, v11")
    A("s_waitcnt lgkmcnt(0)")
    A("s_barrier")
    A("s_mov_b64 exec, vcc")
    A(f"ds_write_b32 v7, v13 offset:{L_FLAG}")
    A(f"s_waitcnt vmcnt({npf})")
    stamp(A, o, 3)
    for t in range(14):
        A(f"s_mov_b64 exec, s[{sMK+2*t}:{sMK+2*t+1}]")
        if t >= 7:
            A(f"s_cbranch_execz K2_sk2_{t}")
        A(f"v_and_b32 v{BINR+t}, 0xffff, v{rec(t)}")
        A(f"ds_add_rtn_u32 v{rec(t)+3}, v{BINR+t}, v13 offset:{L_HIST}")
        if t >= 7:
            A(f"K2_sk2_{t}:")
    A("s_mov_b64 exec, -1")
    A("v_and_b32 v16, 63, v0")
    A("v_lshlrev_b32 v16, 5, v16")
    A("s_waitcnt lgkmcnt(0)")
    A("s_barrier")
    A(f"ds_read_b32 v17, v7 offset:{L_FLAG}")
    A(f"ds_read_b128 v[6:9], v16 offset:{L_HIST}")
    A(f"ds_read_b128 v[10:13], v16 offset:{L_HIST+16}")
    A("s_waitcnt lgkmcnt(1)")
    A(f"v_readfirstlane_b32 s{sMore}, v17")
    for k in range(1, 4):
        A(f"v_add_u32 v{6+k}, v{6+k}, v{5+k}")
    A("s_waitcnt lgkmcnt(0)")
    for k in range(4, 7):
        A(f"v_add_u32 v{6+k}, v{6+k}, v{5+k}")
    A("v_add_u32 v14, v13, v12")
    A("v_add_u32 v15, 63, v14")
    A("v_and_b32 v15, 0xffffffc0, v15")
    A("v_mov_b32 v17, v15")
    wave_scan(A, 17)
    A("s_nop 0")
    A(f"v_readlane_b32 s{sT}, v17, 63")
    A("v_sub_u32 v17, v17, v15")
    A(f"v_add_u32 v17, {L_REC}, v17")
    A(f"s_cmp_gt_u32 s{sT}, {CAP*16}")
    A("s_cbranch_scc1 K2_overflow")
    for k in range(7, 0, -1):
        A(f"v_add_u32 v{6+k}, v17, v{5+k}")
    A("v_mov_b32 v6, v17")
    A(f"ds_write_b128 v16, v[10:13] offset:{L_OFFS+16}")
    A(f"ds_write_b128 v16, v[6:9] offset:{L_OFFS}")
    for t in range(14):
        A(f"s_mov_b64 exec, s[{sMK+2*t}:{sMK+2*t+1}]")
        if t >= 7:
            A(f"s_cbranch_execz K2_sk3_{t}")
        A(f"ds_read_b32 v{BINR+t}, v{BINR+t} offset:{L_OFFS}")
        if t >= 7:
            A(f"K2_sk3_{t}:")
    A("s_mov_b64 exec, -1")
    A(f"s_add_u32 s{sI}, s{s5w}, 5")
    A(f"v_readlane_b32 s{sRem}, v17, s{s5w}")
    A(f"v_readlane_b32 s{sT}, v17, s{sI}")
    A(f"v_add_u32 v14, s{sPad}, v14")
    A("v_cmp_lt_u32 vcc, v14, v15")
    A("v_add_u32 v14, v14, v17")
    A("v_mov_b32 v10, 0xffff0000")
    A("v_mov_b32 v11, 0")
    A("v_mov_b32 v12, 0")
    A(f"s_sub_u32 s{sRem}, s{sT}, s{sRem}")
    A(f"s_lshr_b32 s{sRem}, s{sRem}, 6")
    A(f"s_min_u32 s{sRem}, s{sRem}, {CAP//4}")
    A("s_waitcnt lgkmcnt(0)")
    A(f"v_add_u32 v8, {L_OFFS}, v{vRunA}")
    A("ds_read2_b32 v[6:7], v8 offset0:0 offset1:1")
    A("s_mov_b64 exec, vcc")
    A("ds_write_b96 v14, v[10:12]")
    for t in range(14):
        A(f"s_mov_b64 exec, s[{sMK+2*t}:{sMK+2*t+1}]")
        if t >= 7:
            A(f"s_cbranch_execz K2_sk4_{t}")
        A(f"v_add_u32 v{BINR+t}, v{BINR+t}, v{rec(t)+3}")
        A(f"ds_write_b96 v{BINR+t}, v[{rec(t)}:{rec(t)+2}]")
        if t >= 7:
            A(f"K2_sk4_{t}:")
    A("s_mov_b64 exec, -1")
    A("s_waitcnt lgkmcnt(0)")
    vRun, vA, vAddr, vRec = 6, 7, 8, 10
    A("v_add_u32 v6, 63, v6")
    A("v_add_u32 v7, 63, v7")
    A("v_and_b32 v6, 0xffffffc0, v6")
    A("v_and_b32 v7, 0xffffffc0, v7")
    A(f"v_cmp_lt_u32 s[{sRM}:{sRM+1}], v6, v7")
    A("v_sub_u32 v7, v7, v6")
    A("v_subrev_u32 v7, 64, v7")
    A("v_lshl_or_b32 v6, v7, 12, v6")
    A(f"s_and_b32 s{sRM}, s{sRM}, 0x1f1f1f1f")
    A(f"s_and_b32 s{sRM+1}, s{sRM+1}, 0x1f1f1f1f")
    A(f"s_mov_b32 s{sLeft}, 0")
    A(f"s_mov_b32 s{sPend}, 0")
    A("s_barrier")
    stamp(A, o, 4)

    AR = TR
    BR = TR + 2 * D + (2 * D) % 4
    assert BR + 8 * D <= 168
    tail = []

    def rd(tag):
        A(f"s_sub_u32 s{sLeft}, s{sLeft}, 1")
        A(f"s_cbranch_scc1 K2_nr_{tag}")
        A(f"v_add_u32 v{vA}, 64, v{vA}")
        A(f"K2_bk_{tag}:")
        A(f"ds_read_b96 v[{vRec}:{vRec+2}], v{vA}" if o.rd96 else f"ds_read_b128 v[{vRec}:{vRec+3}], v{vA}")
        tail.append(f"""K2_nr_{tag}:
s_ff1_i32_b64 s{sI}, s[{sRM}:{sRM+1}]
s_bitset0_b64 s[{sRM}:{sRM+1}], s{sI}
v_readlane_b32 s{sT}, v{vRun}, s{sI}
s_lshr_b32 s{sLeft}, s{sT}, 18
s_and_b32 s{sT}, s{sT}, 0x3ffff
v_add_u32 v{vA}, s{sT}, v{vLane16}
s_branch K2_bk_{tag}""")

    def issue(nb, tag):
        A("s_waitcnt lgkmcnt(0)")
        A(f"v_mad_u32_u16 v{vAddr}, v{vRec}, s{s512}, v{vLaneOff} op_sel:[1,0,0,0]")
        A(f"v_readfirstlane_b32 s{sSL+nb}, v{vRec}")
        b = BR + 8 * nb
        A(f"buffer_load_dwordx4 v[{b}:{b+3}], v{vAddr}, s[{sX}:{sX+3}], 0 offen")
        A(f"buffer_load_dwordx4 v[{b+4}:{b+7}], v{vAddr}, s[{sX}:{sX+3}], 0 offen offset:256")
        A(f"v_perm_b32 v{AR+2*nb}, v{vRec+2}, v{vRec+1}, v{vSel0}")
        A(f"v_perm_b32 v{AR+2*nb+1}, v{vRec+2}, v{vRec+1}, v{vSel1}")
        A(f"s_and_b32 s{sSL+nb}, s{sSL+nb}, 0xffff")
        A(f"s_sub_u32 s{sRem}, s{sRem}, 1")
        rd(tag)

    def mf(b, s):
        r = [f"s_waitcnt vmcnt({2*(D-1)+1})"]
        for q in range(4):
            if q == 2:
                r.append(f"s_waitcnt vmcnt({2*(D-1)})")
            a = ACC + 16 * s + 4 * q
            bb = BR + 8 * b + 2 * q
            r.append(f"v_mfma_f32_16x16x16_bf16 v[{a}:{a+3}], v[{AR+2*b}:{AR+2*b+1}], v[{bb}:{bb+1}], v[{a}:{a+3}]")
        return "\n".join(r)

    rd("i")
    for b in range(D - 1):
        A(f"s_cmp_eq_u32 s{sRem}, 0")
        A("s_cbranch_scc1 K2_T0")
        issue(b, f"f{b}")
        A(f"s_add_u32 s{sPend}, s{sPend}, 1")
    for b in range(D):
        nx = f"K2_M{(b+1)%D}"
        A(f"K2_M{b}:")
        A(f"s_cmp_eq_u32 s{sRem}, 0")
        A(f"s_cbranch_scc1 K2_T{b}")
        issue((b + D - 1) % D, f"m{b}")
        A(f"K2_D{b}:")
        A(f"s_cmp_lt_u32 s{sSL+b}, s{sTH+1}")
        A(f"s_cbranch_scc1 K2_C{b}_01")
        A(f"s_cmp_lt_u32 s{sSL+b}, s{sTH+2}")
        A(f"s_cbranch_scc1 K2_C{b}_2")
        A(f"s_cmp_lt_u32 s{sSL+b}, s{sTH+3}")
        A(f"s_cbranch_scc1 K2_C{b}_3")
        A(mf(b, 4))
        if b == D - 1:
            A("s_branch K2_M0")
        tail.append(f"""K2_C{b}_01:
s_cmp_lt_u32 s{sSL+b}, s{sTH}
s_cbranch_scc1 K2_C{b}_0
{mf(b,1)}
s_branch {nx}
K2_C{b}_0:
{mf(b,0)}
s_branch {nx}
K2_C{b}_2:
{mf(b,2)}
s_branch {nx}
K2_C{b}_3:
{mf(b,3)}
s_branch {nx}
K2_T{b}:
s_sub_u32 s{sPend}, s{sPend}, 1
s_cbranch_scc1 K2_done
s_waitcnt vmcnt(0)
s_branch K2_D{b}""")
    for t in tail:
        A(t)
    A("K2_overflow:")
    A(f"s_mov_b32 s{sLim}, {LIM2}")
    A("s_branch K2_round")
    A("K2_next:")
    A(f"s_add_u32 s{sDone}, s{sDone}, s{sLim}")
    A("s_waitcnt lgkmcnt(0)")
    A("s_branch K2_round")
    A("K2_done:")
    A(f"s_cmp_lg_u32 s{sMore}, 0")
    A("s_cbranch_scc1 K2_next")
    stamp(A, o, 5)

    def a_(s, hl, u):
        return ACC + 16 * s + 4 * hl + u

    def b_(s, hl, u):
        return ACC + 16 * s + 8 + 4 * hl + u

    vW1, vR1, vR0, vR2, vR3, vWF, vO1, vO0 = 6, 7, 8, 9, 10, 11, 12, 13
    BF = TR
    AF = TR + 40
    NAF = 7
    A("s_waitcnt lgkmcnt(0)")
    A(f"s_mul_i32 s{sT}, s{sW}, {S*NS}")
    A(f"s_add_u32 s{sT}, s{sT}, {L_PST}")
    A("v_and_b32 v14, 7, v0")
    A("v_lshlrev_b32 v14, 4, v14")
    A(f"v_lshrrev_b32 v15, 2, v{vLane16}")
    A("v_bfe_u32 v16, v0, 3, 1")
    A(f"v_mul_u32_u24 v16, {TS}, v16")
    A(f"v_add3_u32 v{vW1}, v14, v15, v16")
    A(f"v_add_u32 v{vW1}, s{sT}, v{vW1}")
    A("v_and_b32 v14, 63, v0")
    A(f"v_lshlrev_b32 v{vWF}, 4, v14")
    lg = []

    def ds(txt, tag):
        A(txt)
        lg.append(tag)

    def wait(tag):
        if tag not in lg:
            return
        i = len(lg) - 1 - lg[::-1].index(tag)
        n = len(lg) - 1 - i
        A(f"s_waitcnt lgkmcnt({min(n,15)})")
        del lg[:i + 1]

    for s in range(S):
        A(f"v_cvt_pk_bf16_f32 v{a_(s,0,0)}, v{a_(s,0,0)}, v{a_(s,1,0)}")
        A(f"v_cvt_pk_bf16_f32 v{b_(s,0,0)}, v{b_(s,0,0)}, v{b_(s,1,0)}")
        ds(f"ds_write_b32 v{vW1}, v{a_(s,0,0)} offset:{s*NS}", "w")
        ds(f"ds_write_b32 v{vW1}, v{b_(s,0,0)} offset:{s*NS + 2*TS}", "w")
    A("v_and_b32 v14, 15, v0")
    A("v_mul_u32_u24 v15, 43, v14")
    A("v_lshrrev_b32 v15, 7, v15")
    A("v_mul_u32_u24 v16, 3, v15")
    A("v_sub_u32 v16, v14, v16")
    A(f"v_min_u32 v17, {S-1}, v15")
    A(f"v_mul_u32_u24 v17, {NS}, v17")
    A(f"v_add3_u32 v{vR0}, v17, v{vLane16}, s{sT}")
    A(f"v_mul_u32_u24 v17, {TS}, v16")
    A(f"v_add_u32 v{vR1}, v{vR0}, v17")
    A(f"v_add_u32 v{vR2}, v{vR1}, v17")
    A(f"v_sub_u32 v{vR3}, v{vR0}, v17")
    A(f"v_sub_u32 v{vR3}, v{vR3}, v17")
    for h in range(2):
        ds(f"ds_read_b128 v[{BF+4*h}:{BF+4*h+3}], v{vR0} offset:{h*64}", f"B{h}")
    for h in range(2):
        ds(f"ds_read_b128 v[{BF+4*(6+h)}:{BF+4*(6+h)+3}], v{vR1} offset:{TS + h*64}", f"B{6+h}")
    A(f"s_mul_i32 s{sI}, s{sBK}, {BN}")
    A(f"s_add_u32 s{sI}, s{sI}, s{s5w}")
    A(f"v_add_u32 v17, s{sI}, v15")
    A("v_lshlrev_b32 v17, 9, v17")
    A(f"v_lshl_add_u32 v17, v{vLane16}, 1, v17")
    A(f"s_sub_u32 s{sI}, {BN}, s{s5w}")
    A(f"s_min_u32 s{sI}, s{sI}, {S}")
    A(f"v_cmp_gt_u32 vcc, s{sI}, v15")
    A("v_mov_b32 v14, 0x7f000000")
    A("v_lshlrev_b32 v15, 7, v16")
    A("v_cndmask_b32 v17, v14, v17, vcc")
    A("v_cmp_eq_u32 vcc, 0, v16")
    A(f"v_add_u32 v{vO1}, v17, v15")
    A("s_nop 0")
    A(f"v_cndmask_b32 v{vO0}, v14, v17, vcc")

    order = [(ks, t) for ks in (0, 1, 6, 7, 2, 3, 4, 5, 8, 9) for t in range(4)]
    nrd = [0]

    def afrd():
        if nrd[0] < 40:
            ks, t = order[nrd[0]]
            r = AF + 4 * (nrd[0] % NAF)
            ds(f"ds_read_b128 v[{r}:{r+3}], v{vWF} offset:{L_WF + (ks*4+t)*1024}", f"A{nrd[0]}")
            nrd[0] += 1

    for _ in range(NAF):
        afrd()
    dp = "row_mask:0xf bank_mask:0xc"
    idp = "quad_perm:[0,1,2,3] " + dp
    ror = "row_ror:8 " + dp
    for s in range(S):
        for hl in range(2):
            A(f"v_add_f32_dpp v{a_(s,hl,1)}, v{b_(s,hl,3)}, v{a_(s,hl,1)} {idp}")
        for hl in range(2):
            A(f"v_subrev_f32_dpp v{a_(s,hl,3)}, v{b_(s,hl,1)}, v{a_(s,hl,3)} {idp}")
        for hl in range(2):
            A(f"v_sub_f32_dpp v{a_(s,hl,2)}, v{b_(s,hl,1)}, v{a_(s,hl,2)} {ror}")
        for hl in range(2):
            A(f"v_add_f32_dpp v{a_(s,hl,1)}, v{b_(s,hl,2)}, v{a_(s,hl,1)} {ror}")
        for hl in range(2):
            A(f"v_subrev_f32_dpp v{b_(s,hl,2)}, v{b_(s,hl,3)}, v{b_(s,hl,2)} {ror}")
        A(f"v_cvt_pk_bf16_f32 v{a_(s,0,3)}, v{a_(s,0,3)}, v{a_(s,1,3)}")
        A(f"v_cvt_pk_bf16_f32 v{a_(s,0,2)}, v{a_(s,0,2)}, v{a_(s,1,2)}")
        A(f"v_cvt_pk_bf16_f32 v{a_(s,0,1)}, v{a_(s,0,1)}, v{a_(s,1,1)}")
        A(f"v_cvt_pk_bf16_f32 v{b_(s,0,2)}, v{b_(s,0,2)}, v{b_(s,1,2)}")
        ds(f"ds_write_b32 v{vW1}, v{a_(s,0,3)} offset:{s*NS + 4*TS}", "w")
        ds(f"ds_write_b32 v{vW1}, v{a_(s,0,2)} offset:{s*NS + 2*TS}", "w")
        ds(f"ds_write_b32 v{vW1}, v{a_(s,0,1)} offset:{s*NS}", "w")
        ds(f"ds_write_b32 v{vW1}, v{b_(s,0,2)} offset:{s*NS + 6*TS}", "w")
    for h in range(2):
        ds(f"ds_read_b128 v[{BF+4*(2+h)}:{BF+4*(2+h)+3}], v{vR0} offset:{TS + h*64}", f"B{2+h}")
    for h in range(2):
        ds(f"ds_read_b128 v[{BF+4*(4+h)}:{BF+4*(4+h)+3}], v{vR2} offset:{h*64}", f"B{4+h}")
    for h in range(2):
        ds(f"ds_read_b128 v[{BF+4*(8+h)}:{BF+4*(8+h)+3}], v{vR3} offset:{7*TS + h*64}", f"B{8+h}")
    wait("w")
    O0, O1, G = ACC, ACC + 16, ACC + 32
    sig = []
    for r in range(16):
        sig.append(f"v_mul_f32 v{G+r}, 0xbfb8aa3b, v{O0+r}")
    for r in range(16):
        sig.append(f"v_exp_f32 v{G+r}, v{G+r}")
    for r in range(16):
        sig.append(f"v_add_f32 v{G+r}, 1.0, v{G+r}")
    for r in range(16):
        sig.append(f"v_rcp_f32 v{G+r}, v{G+r}")
    for r in range(8):
        sig.append(f"v_cvt_pk_bf16_f32 v{G+16+r}, v{O0+2*r}, v{O0+2*r+1}")
    for i, (ks, t) in enumerate(order):
        wait(f"A{i}")
        wait(f"B{ks}")
        o_ = (O0 if ks < 4 else O1) + 4 * t
        c = "0" if ks in (0, 6) else f"v[{o_}:{o_+3}]"
        r = AF + 4 * (i % NAF)
        A(f"v_mfma_f32_16x16x32_bf16 v[{o_}:{o_+3}], v[{r}:{r+3}], v[{BF+4*ks}:{BF+4*ks+3}], {c}")
        afrd()
        if i >= 28:
            for _ in range(6):
                if sig:
                    A(sig.pop(0))
    while sig:
        A(sig.pop(0))
    A(f"buffer_store_dwordx4 v[{G+16}:{G+19}], v{vO0}, s[{sOUT}:{sOUT+3}], 0 offen {o.out_store}")
    A(f"buffer_store_dwordx4 v[{G+20}:{G+23}], v{vO0}, s[{sOUT}:{sOUT+3}], 0 offen offset:16 {o.out_store}")
    A("s_nop 1")
    for r in range(16):
        A(f"v_mul_f32 v{O1+r}, v{O1+r}, v{G+r}")
    for r in range(8):
        A(f"v_cvt_pk_bf16_f32 v{G+24+r}, v{O1+2*r}, v{O1+2*r+1}")
    A(f"buffer_store_dwordx4 v[{G+24}:{G+27}], v{vO1}, s[{sOUT}:{sOUT+3}], 0 offen offset:128 {o.out_store}")
    A(f"buffer_store_dwordx4 v[{G+28}:{G+31}], v{vO1}, s[{sOUT}:{sOUT+3}], 0 offen offset:144 {o.out_store}")
    if o.diag:
        stamp(A, o, 6)
        A("s_waitcnt vmcnt(0)")
        stamp(A, o, 7)
        stamp_store(A, o, 8, 1, sWS, sW, TR)
    A("K2_end:")
    A("s_endpgm")


class Opt:
    D = 3
    pf = 1
    pf_shift = 7
    k1_xwarm = 1
    k1_store = ""
    tab_store = ""
    out_store = ""
    rd96 = 0
    diag = 0

    def __init__(self, **kw):
        for k, v in kw.items():
            assert hasattr(self, k), k
            setattr(self, k, v)


def desc(name, vg):
    return f""".amdhsa_kernel {name}
  .amdhsa_next_free_vgpr {vg}
  .amdhsa_next_free_sgpr 102
  .amdhsa_accum_offset {(vg+3)//4*4}
  .amdhsa_group_segment_fixed_size 0
  .amdhsa_kernarg_size 96
  .amdhsa_user_sgpr_count 2
  .amdhsa_user_sgpr_kernarg_segment_ptr 1
  .amdhsa_system_sgpr_workgroup_id_x 1
.end_amdhsa_kernel
"""


def gen(**kw):
    o = Opt(**kw)
    A = Asm()
    out = HEADER
    out += f"; @launch kernel=part_kernel grid=(256,1,1) block=(896,1,1) lds={K1_LDS}\n"
    out += f"; @launch kernel={NAME}_kernel grid=(256,1,1) block=(640,1,1) lds={K2_LDS}\n"
    out += '.amdgcn_target "amdgcn-amd-amdhsa--gfx950"\n.text\n'
    out += ".globl part_kernel\n.p2align 8\n.type part_kernel,@function\n"
    gen_k1(A, o)
    out += A.text()
    A = Asm()
    out += f".globl {NAME}_kernel\n.p2align 8\n.type {NAME}_kernel,@function\n"
    gen_k2(A, o)
    out += A.text()
    out += '.section .rodata,"a"\n.p2align 6\n' + desc("part_kernel", 64) + ".p2align 6\n" + desc(NAME + "_kernel", 168)
    return out


if __name__ == "__main__":
    kw = {}
    path = "cdna_kernels/" + NAME + ".s"
    for a in sys.argv[1:]:
        k, v = a.split("=", 1)
        if k == "out":
            path = v
        else:
            kw[k] = int(v) if v.lstrip("-").isdigit() else v
    open(path, "w").write(gen(**kw))
```
